```python
import torch

def _softmax(x, axis=-1):
    return torch.softmax(x, dim=axis)
def _gelu(x):
    return torch.nn.functional.gelu(x, approximate="tanh")
def _silu(x):
    return torch.nn.functional.silu(x)
def _sigmoid(x):
    return torch.sigmoid(x)
def _layernorm(x, axis=-1, eps=1e-5):
    m = x.mean(dim=axis, keepdim=True)
    v = x.var(dim=axis, keepdim=True, unbiased=False)
    return (x - m) / torch.sqrt(v + eps)
def _scatter_add(tgt, idx, src, axis=0):
    return tgt.clone().index_add_(axis, idx, src)
def _segment_sum(src, seg, n):
    out = torch.zeros((n,) + src.shape[1:], dtype=src.dtype)
    return out.index_add_(0, seg, src)
def _pad(x, pw):
    flat = tuple(v for pair in reversed(pw) for v in pair)
    return torch.nn.functional.pad(x, flat)

kernel_name = 'standalone__gqa_softmax__near_ridge'

def setup_inputs():

    _w = (lambda a: (lambda t: t.to(torch.bfloat16) if t.is_floating_point() else t)(torch.as_tensor(a)))
    B, Hq, Hkv, Sq, Sk, D = 16, 32, 32, 624, 624, 128
    return {
        "q": _w((lambda *s: torch.randn(*s, dtype=torch.bfloat16) * 0.8)(B, Hq, Sq, D)),
        "k": _w((lambda *s: torch.randn(*s, dtype=torch.bfloat16) * 0.8)(B, Hkv, Sk, D)),
        "v": _w((lambda *s: torch.randn(*s, dtype=torch.bfloat16) * 0.05)(B, Hkv, Sk, D)),
    }

def reference(q, k, v):
    B, Hq, Sq, D = q.shape
    Hkv = k.shape[1]
    rep = Hq // Hkv
    k = (lambda x, n, axis: torch.repeat_interleave(x, n, dim=axis))(k, rep, axis=1)
    v = (lambda x, n, axis: torch.repeat_interleave(x, n, dim=axis))(v, rep, axis=1)
    scale = D ** -0.5
    scores = torch.einsum("bhqd,bhkd->bhqk", q, k) * scale
    p = _softmax(scores, axis=-1)
    return torch.einsum("bhqk,bhkd->bhqd", p, v)
```

```python
import re
def regs(spec):
    out=set()
    for m in re.finditer(r'\b([va])\[(\d+):(\d+)\]|\b([va])(\d+)\b', spec):
        if m.group(1): out|={m.group(1)+str(i) for i in range(int(m.group(2)),int(m.group(3))+1)}
        else: out.add(m.group(4)+m.group(5))
    return out
class I:
    def __init__(s, text, own='both', tag=None, need=None):
        s.text=text; s.own=own; s.tag=tag; s.need=need; s.vm=None; s.lg=None
        op=text.split()[0]; s.op=op; rest=text[len(op):]; a=[x.strip() for x in rest.split(',')]
        s.w=set(); s.r=set(); s.c=set()
        if op.startswith('v_mfma'): s.k='mfma'; s.w=regs(a[0]); s.r=regs(a[1])|regs(a[2]); s.c=regs(a[3])
        elif op.startswith('v_permlane'): s.k='perm'; s.w=regs(rest); s.r=regs(rest)
        elif op.startswith('v_cmp'): s.k='valu'; s.r=regs(rest)
        elif op.startswith('v_readfirstlane'): s.k='rfl'; s.r=regs(a[1])
        elif op.startswith('v_'):
            s.k='trans' if op in('v_exp_f32','v_rcp_f32') else 'valu'; s.w=regs(a[0]); s.r=regs(','.join(a[1:]))
        elif op.startswith('ds_read'): s.k='ds'; s.w=regs(a[0]); s.r=regs(a[1].split()[0])
        elif op.startswith('ds_write'): s.k='dsw'; s.r=regs(rest.split('offset')[0])
        elif op.startswith('buffer_load'):
            if text.rstrip().endswith('lds'): s.k='dma'; s.r=regs(a[0])
            else: s.k='vld'; s.w=regs(a[0]); s.r=regs(a[1])
        elif op.startswith('buffer_store'): s.k='vst'; s.r=regs(a[0])|regs(a[1]); s.d=regs(a[0])
        elif op=='WAIT': s.k='wait'
        elif op=='s_nop': s.k='nop'
        elif op.endswith(':'): s.k='label'
        else: s.k='salu'
    def isvalu(s): return s.k in('valu','trans','perm','rfl')
    def states(s):
        if s.k=='nop': return int(s.text.split()[1])+1
        if s.k=='label': return 0
        return 1
    def emit(s):
        if s.k=='wait':
            t=[]
            if s.vm is not None and s.vm<63: t.append(f"vmcnt({s.vm})")
            if s.lg is not None and s.lg<15: t.append(f"lgkmcnt({s.lg})")
            return "s_waitcnt "+" ".join(t) if t else "s_nop 0"
        return s.text
def need_states(p, c):
    n=0
    if p.k=='mfma':
        if c.k=='mfma':
            if p.w&c.r: n=8
            if p.w&c.c and not (p.w==c.c and p.op==c.op): n=max(n,8)
        elif p.w&(c.r|c.w): n=8
        if c.isvalu() and p.c&c.w: n=max(n,3)
    elif p.isvalu():
        if c.k=='mfma' and p.w&(c.r|c.c): n=2
        if c.k=='perm' and p.w&c.r: n=2
        if c.k=='rfl' and p.w&c.r: n=1
        if p.k=='trans' and c.k!='mfma' and p.w&c.r: n=max(n,1)
    elif p.k=='vst':
        if p.d&c.w: n=2
    elif p.k=='salu' and ' m0,' in p.text and c.k=='dma': n=1
    return n
def fix_hazards(seq, pre=()):
    out=[]; added=0
    for c in seq:
        req=0
        for pr in (pre or [[]]):
            d=0
            for p in reversed((list(pr[-12:])+out[-12:])):
                if d>=8: break
                req=max(req, need_states(p,c)-d); d+=p.states()
        if req>0: out.append(I(f"s_nop {req-1}")); added+=req
        out.append(c)
    return out, added
def resolve_waits(path):
    vm=[]; lg=[]
    for blk in path:
        for c in blk:
            if c.k in('dma','vld','vst'): vm.append(c.tag)
            elif c.k in('ds','dsw'): lg.append(c.tag)
            elif c.k=='wait':
                for t in c.need:
                    if t=='lg0': c.lg=0; continue
                    if t=='vm0': c.vm=0; continue
                    q,att=(lg,'lg') if t.startswith('L') else (vm,'vm')
                    idx=[i for i,x in enumerate(q) if x==t]
                    if not idx: continue
                    n=len(q)-1-idx[-1]; cur=getattr(c,att)
                    setattr(c,att,n if cur is None else min(cur,n))
def check_loads(path):
    vm=[]; lg=[]
    for blk in path:
        for c in blk:
            if c.k=='wait':
                if c.vm is not None and c.vm<63: vm=vm[max(0,len(vm)-c.vm):] if c.vm else []
                if c.lg is not None and c.lg<15: lg=lg[max(0,len(lg)-c.lg):] if c.lg else []
                continue
            if c.op=='s_waitcnt':
                if 'vmcnt(0)' in c.text: vm=[]
                if 'lgkmcnt(0)' in c.text: lg=[]
            for p in vm+lg:
                assert not (p.w&(c.r|c.w|c.c)), f"use of pending load: {p.text} -> {c.text}"
            if c.k in('dma','vld','vst'): vm.append(c)
            elif c.k in('ds','dsw'): lg.append(c)
```

```python
import sys, struct, math
from asmlib import *
from mk import build
HEAD=159744; TOTAL=81788928
def f2u(x): return struct.unpack('<I',struct.pack('<f',x))[0]
S_=lambda u:160+8*(u&1); P_=lambda u:176+4*(u&1); NM=lambda j:184+4*j
KA=204; VA=208; DK=216; DV=218; QOFF=220; OOFF=221; STG=222; RCP=223; MF=224; MT=229; QR=232; QO=248; QT=252
AQ=lambda j,ks:16*j+4*ks; AK=lambda s,t,ks:80+32*(s&1)+16*t+4*ks; AV=lambda s,dt:144+32*(s&1)+4*dt; AL=lambda j:208+4*j; ONES=228
O_=lambda j,dt:32*j+4*dt
v4=lambda b:f"v[{b}:{b+3}]"; a4=lambda b:f"a[{b}:{b+3}]"; v2=lambda b:f"v[{b}:{b+1}]"; a2=lambda b:f"a[{b}:{b+1}]"
SJ=lambda j:"0" if j==0 else f"s{25+j}"
M32="v_mfma_f32_16x16x32_bf16"; M16="v_mfma_f32_16x16x16_bf16"
VRING=40960; STGB=81920
def ownU(U): return 'new' if U>=100 else 'old'
def qk(U):
    u=U%100; s,j=divmod(u,5); L=[]
    for t in range(1 if s==0 else 2):
        d=v4(S_(u)+4*t)
        for ks in range(4):
            c=d if ks else ("0" if s==0 else v4(NM(j)))
            L.append(I(f"{M32} {d}, {a4(AK(s,t,ks))}, {a4(AQ(j,ks))}, {c}",ownU(U)))
    return L
def pv(U):
    u=U%100; s,j=divmod(u,5); L=[]
    for dt in range(9):
        D=v4(O_(j,dt)) if dt<8 else a4(AL(j)); A=AV(s,dt) if dt<8 else ONES
        if s==0: L.append(I(f"{M16} {D}, {a2(A)}, {v2(P_(u))}, 0",ownU(U)))
        else: L.append(I(f"{M32} {D}, {a4(A)}, {v4(P_(u))}, {D}",ownU(U)))
    return L
def dma(T,own):
    t=T%20; st=T%5; L=[]
    for kv,(srd,base,va) in enumerate((("s[4:7]",0,DK),("s[8:11]",VRING,DV))):
        L.append([I(f"s_add_u32 m0, s32, {base+st*8192}",own)])
        for i in range(2):
            L.append(I(f"buffer_load_dwordx4 v{va+i}, {srd}, s24 offen offset:{1024*i} lds",own,tag=f"D{t}"))
    return L
def kreads(T,own):
    s=T%20; st=T%5
    return [I(f"ds_read_b128 {a4(AK(s,t,ks))}, v{KA+ks} offset:{st*8192+t*4096}",own) for t in range(1 if s==0 else 2) for ks in range(4)]
def vreads(T,own):
    s=T%20; st=T%5
    return [I(f"ds_read_b64_tr_b16 {a2(AV(s,dt)+2*t)}, v{VA+dt} offset:{st*8192+t*4096}",own) for dt in range(8) for t in range(1 if s==0 else 2)]
def qload(f,dst,own='both'):
    j,ks=divmod(f,4); return I(f"buffer_load_dwordx4 {v4(dst)}, v{QOFF}, s[12:15], {SJ(j)} offen offset:{64*ks}",own,tag=f"Q{f}")
def qscale(src,f):
    L=[]
    for i in range(4):
        a=QT+2*(i&1); b=a+1
        L+=[I(f"v_lshlrev_b32 v{a}, 16, v{src+i}"),I(f"v_and_b32 v{b}, s31, v{src+i}"),I(f"v_mul_f32 v{a}, s30, v{a}"),I(f"v_mul_f32 v{b}, s30, v{b}"),I(f"v_cvt_pk_bf16_f32 v{QO+i}, v{a}, v{b}")]
    L.append(I(f"ds_write_b128 v{STG}, {v4(QO)} offset:{1024*f}"))
    return L
def qread(j,own): return [I(f"ds_read_b128 {a4(AQ(j,ks))}, v{STG} offset:{1024*(4*j+ks)}",own) for ks in range(4)]
def softmax0(U):
    j=U%100; s=S_(j); a,b=MT,MT+1; o='new'
    L=[f"v_max3_f32 v{a}, v{s}, v{s+1}, v{s+2}",f"v_max3_f32 v{a}, v{a}, v{s+3}, v{MF+j}",f"v_mov_b32 v{b}, v{a}",
       f"v_permlane32_swap_b32 v{a}, v{b}",f"v_max_f32 v{a}, v{a}, v{b}",f"v_mov_b32 v{b}, v{a}",
       f"v_permlane16_swap_b32 v{a}, v{b}",f"v_max_f32 v{a}, v{a}, v{b}"]
    L+=[f"v_sub_f32 v{s+i}, v{s+i}, v{a}" for i in range(4)]
    for i in range(4): L+=[f"v_exp_f32 v{s+i}, v{s+i}",f"v_sub_f32 v{NM(j)+i}, 0, v{a}"]
    L+=[f"v_cvt_pk_bf16_f32 v{P_(j)+i}, v{s+2*i}, v{s+2*i+1}" for i in range(2)]
    return [I(x,o) for x in L]
def epilogue(j):
    o='old'; L=[I(f"v_accvgpr_read_b32 v{RCP}, a{AL(j)}",o),I(f"v_cmp_nge_f32 vcc, s37, v{RCP}",o),I(f"v_rcp_f32 v{RCP}, v{RCP}",o),I("s_or_b64 s[40:41], s[40:41], vcc",o)]
    pend=[]
    for p in range(4):
        b=O_(j,2*p); mul=[I(f"v_mul_f32 v{b+i}, v{b+i}, v{RCP}",o) for i in range(8)]
        L+=mul[:2]+pend+mul[2:]
        L+=[I(f"v_cvt_pk_bf16_f32 v{b+i}, v{b+2*i}, v{b+2*i+1}",o) for i in range(4)]
        pend=[I(f"v_permlane16_swap_b32 v{b}, v{b+2}",o),I(f"v_permlane16_swap_b32 v{b+1}, v{b+3}",o),
              I(f"buffer_store_dwordx4 {v4(b)}, v{OOFF}, s[16:19], {SJ(j)} offen offset:{64*p}"+OPT.get('st',''),o,tag="ST")]
    return L+pend
COST={'valu':1,'perm':1,'ds':1,'trans':2,'dma':2,'dsw':2,'vld':2,'vst':2,'salu':1,'wait':1}
class Sched:
    def __init__(s,B0,B1):
        s.m=[]; s.qk0={}; s.pv0={}; s.end={}
        for B in range(B0,B1+1):
            s.qk0[B]=len(s.m); s.m+=qk(B+2); s.pv0[B]=len(s.m); s.m+=pv(B); s.end[B]=len(s.m)-1
        n=len(s.m); s.pre=[[] for _ in range(n)]; s.lead=[[] for _ in range(n)]; s.body=[[] for _ in range(n)]; s.used=[0]*n
    def put(s,op,g): s.body[g].append(op); s.used[g]+=COST[op.k]
    def place(s,op,lo,hi):
        c=COST[op.k]
        for g in range(lo,hi+1):
            if s.used[g]+c<=2: s.put(op,g); return g
        g=min(range(lo,hi+1),key=lambda x:s.used[x]); s.put(op,g); return g
    def stream(s,ops,lo,hi,slack=3):
        prev=lo; n=len(ops)
        for i,op in enumerate(ops):
            t=max(prev,lo+(hi-lo+1)*i//n)
            if isinstance(op,list):
                t=max(t,prev+1) if i else t
                s.lead[t]+=op; prev=t+(0 if op[0].k=='wait' else 1); continue
            assert t<=hi
            prev=s.place(op,t,min(t+slack,hi))
        return prev
    def lin(s,g0,g1,keep):
        L=[]
        for g in range(g0,g1+1):
            b=sorted(s.body[g],key=lambda x:0 if x.k=='ds' else 1)
            L+=[x for x in s.pre[g]+[s.m[g]]+s.lead[g]+b if x.own in keep]
        return L
def schedule():
    sc=Sched(5,104)
    for B in range(5,105):
        U=B+1
        if U%100<5: continue
        s=S_(U); g0=sc.qk0[B]; n=sc.end[B]-g0+1; pos=[]
        for i in range(8): g=g0+(n-1)*i//8; sc.put(I(f"v_exp_f32 v{s+i}, v{s+i}",ownU(U)),g); pos.append(g)
        for i in range(4): sc.place(I(f"v_cvt_pk_bf16_f32 v{P_(U)+i}, v{s+2*i}, v{s+2*i+1}",ownU(U)),pos[2*i+1]+1,min(sc.end[B],pos[2*i+1]+3))
    for SS in range(2,22):
        B=5*SS-2; o='new'; T=SS+5; g=sc.qk0[B]
        sc.pre[g]+=[I("WAIT",o,need=[f"D{(SS+1)%20}",'lg0']),I("WAIT",'tail',need=['lg0']),I("s_barrier",o)]
        t=T%20
        up=[I("s_mov_b32 s24, s34",o),I("s_mov_b32 s6, s38",o),I("s_mov_b32 s10, s38",o)] if t==0 else [I(f"s_add_u32 s24, s24, {4096 if t==1 else 8192}",o)]
        sc.stream([up]+dma(T,o),g,sc.end[min(B+OPT.get('dmaspan',1),104)],slack=4)
    for SS in range(1,22):
        T=SS+1; o='new' if T>=20 else 'old'
        if SS>=2: sc.stream(kreads(T,o),sc.qk0[5*SS-2],sc.end[5*SS-1])
        if SS<=20: sc.stream(vreads(T,o),sc.qk0[5*SS],sc.end[5*SS+2]-8)
    for j in range(5): sc.stream(qread(j,'new'),sc.pv0[93+j],sc.pv0[93+j]+2,slack=1)
    for U in range(100,105): sc.stream(softmax0(U),sc.qk0[U-1],sc.end[U-1],slack=1)
    E0=sc.qk0[96]+4; E1=sc.pv0[104]-2
    for j in range(5):
        lo=E0+(E1-E0)*j//5; hi=E0+(E1-E0)*(j+1)//5-1
        assert lo>sc.end[95+j]+2 and hi<sc.pv0[100+j]-1,(j,lo,hi)
        sc.stream(epilogue(j),lo,hi,slack=1)
    sc.lead[E1+1]+=[I(x,'old') for x in("s_cmp_lg_u64 s[40:41], 0","s_cselect_b32 s45, s42, 0","s_or_b32 s36, s36, s45","s_lshl_b32 s42, s42, 1","s_mov_b64 s[40:41], 0")]
    g=sc.qk0[5]
    su=[["s_add_u32 s16, s22, s34","s_addc_u32 s17, s23, 0"],[f"s_add_u32 s34, s34, {128*HEAD}"],["s_add_u32 s12, s20, s34","s_addc_u32 s13, s21, 0"],
        ["s_sub_u32 s33, s33, 1"],["s_cmp_lg_u32 s33, 0",f"s_cselect_b32 s14, {HEAD}, 0",f"s_cselect_b32 s38, {TOTAL}, 0"]]
    for i,x in enumerate(su): sc.lead[g+2*i]+=[I(y) for y in x]
    sc.stream([qload(f,QR+4*f) for f in range(4)],sc.qk0[6],sc.end[7],slack=4)
    G0=sc.qk0[18]; G1=sc.end[92]-6
    for f in range(20):
        lo=G0+(G1-G0)*f//20; hi=G0+(G1-G0)*(f+1)//20-1; src=QR+4*(f%4)
        ops=[[I("WAIT",need=[f"Q{f}"])]]+qscale(src,f)+([qload(f+4,src)] if f<16 else [])
        sc.stream(ops,lo,hi,slack=5)
    return sc
def T(s): return [I(x.strip()) for x in s.strip().split('\n') if x.strip()]
def setup():
    c=math.log2(math.e)/math.sqrt(128)
    L=T(f"""
    s_cmp_ge_u32 s2, 256
    s_cbranch_scc1 L_end
    s_load_dwordx4 s[20:23], s[0:1], 0
    s_load_dwordx4 s[44:47], s[0:1], 16
    v_lshrrev_b32 v1, 6, v0
    v_and_b32 v2, 63, v0
    v_readfirstlane_b32 s48, v1
    v_lshrrev_b32 v3, 4, v2
    v_and_b32 v4, 15, v2
    s_and_b32 s49, s2, 7
    s_lshr_b32 s50, s2, 4
    s_lshl_b32 s50, s50, 3
    s_add_u32 s49, s49, s50
    s_mul_i32 s51, s49, {HEAD}
    s_lshr_b32 s50, s2, 3
    s_and_b32 s50, s50, 1
    s_mul_i32 s50, s50, 320
    s_mul_i32 s52, s48, 80
    s_add_u32 s50, s50, s52
    s_lshl_b32 s32, s48, 11
    s_lshl_b32 s53, s48, 3
    v_add_u32 v5, s53, v3
    v_add_u32 v6, 4, v5
    v_xor_b32 v7, v5, v4
    v_and_b32 v7, 15, v7
    v_lshlrev_b32 v7, 4, v7
    v_lshl_add_u32 v{DK}, v5, 8, v7
    v_xor_b32 v7, v6, v4
    v_and_b32 v7, 15, v7
    v_lshlrev_b32 v7, 4, v7
    v_lshl_add_u32 v{DK+1}, v5, 8, v7
    v_lshlrev_b32 v7, 1, v3
    v_xor_b32 v7, v7, v4
    v_lshlrev_b32 v7, 4, v7
    v_lshl_add_u32 v{DV}, v5, 8, v7
    v_xor_b32 v7, 0x80, v7
    v_lshl_add_u32 v{DV+1}, v5, 8, v7
    v_add_u32 v5, s50, v4
    v_lshlrev_b32 v5, 8, v5
    v_lshl_add_u32 v{QOFF}, v3, 4, v5
    s_mov_b32 s26, 0x1000
    s_mov_b32 s27, 0x2000
    s_mov_b32 s28, 0x3000
    s_mov_b32 s29, 0x4000
    s_mov_b32 s7, 0x00020000
    s_mov_b32 s11, 0x00020000
    s_mov_b32 s15, 0x00020000
    s_mov_b32 s19, 0x00020000
    s_mov_b32 s18, {HEAD}
    s_mov_b32 s34, s51
    s_mov_b32 s33, 4
    s_mov_b32 s43, 0
    s_mov_b32 s36, 0
    s_mov_b32 s42, 1
    s_waitcnt lgkmcnt(0)
    s_mov_b32 s4, s22
    s_mov_b32 s5, s23
    s_mov_b32 s8, s44
    s_mov_b32 s9, s45
    s_mov_b32 s22, s46
    s_mov_b32 s23, s47
    s_mov_b32 s16, s46
    s_mov_b32 s17, s47
    v_and_b32 v6, 1, v3
    v_lshrrev_b32 v7, 1, v3
    v_lshl_add_u32 v5, v6, 5, v5
    v_lshl_add_u32 v{OOFF}, v7, 4, v5
    s_mul_i32 s52, s48, 20480
    s_add_u32 s52, s52, {STGB}
    v_lshlrev_b32 v5, 4, v2
    v_add_u32 v{STG}, s52, v5
    s_mov_b32 s30, {f2u(c)}
    s_mov_b32 s31, 0xffff0000
    s_mov_b32 s37, {f2u(2.0**32)}
    v_xor_b32 v5, v3, v4
    v_lshlrev_b32 v5, 4, v5
    v_lshl_add_u32 v{KA}, v4, 8, v5
    v_xor_b32 v{KA+1}, 64, v{KA}
    v_xor_b32 v{KA+2}, 0x80, v{KA}
    v_xor_b32 v{KA+3}, 0xc0, v{KA}
    v_lshrrev_b32 v5, 2, v2
    v_and_b32 v6, 7, v5
    v_lshlrev_b32 v6, 5, v6
    v_lshl_add_u32 v6, v5, 8, v6
    v_and_b32 v7, 3, v2
    v_lshl_add_u32 v6, v7, 3, v6
    v_add_u32 v{VA}, {VRING}, v6
    v_cmp_eq_u32 vcc, 0, v7
    v_mov_b32 v5, 0x3f803f80
    v_lshlrev_b32 v231, 4, v3
    v_cndmask_b32 v5, 0, v5, vcc
    v_lshl_add_u32 v231, v4, 8, v231
    """)
    L+=[I(f"v_xor_b32 v{VA+d}, {32*d}, v{VA}") for d in range(1,8)]
    L+=[I(f"v_accvgpr_write_b32 a{ONES+i}, v5") for i in range(4)]
    return L
def start():
    L=T(f"""
    L_start:
    s_add_u32 s12, s20, s34
    s_addc_u32 s13, s21, 0
    s_mov_b32 s14, {HEAD}
    s_mov_b32 s6, {TOTAL}
    s_mov_b32 s10, {TOTAL}
    s_mov_b32 s24, s34
    s_mov_b64 s[40:41], 0
    """)
    fl=lambda x:[z for y in x for z in (y if isinstance(y,list) else [y])]
    L+=fl(dma(0,'both'))+[qload(f,4*f) for f in range(20)]
    for t in range(1,4): L+=[I(f"s_add_u32 s24, s24, {4096 if t==1 else 8192}")]+fl(dma(t,'both'))
    L+=[I(f"v_mov_b32 v{MF+j}, 0xff800000") for j in range(5)]
    for f in range(20): L+=[I("WAIT",need=[f"Q{f}"])]+qscale(4*f,f)
    L+=T("s_cmp_eq_u32 s43, 0\ns_cbranch_scc1 L_go")
    R=[I("s_waitcnt lgkmcnt(0)")]
    for j in range(5): R+=qread(j,'both')
    R+=T("s_mov_b32 s54, s34\ns_mov_b32 s55, 39\nL_mp:")
    R+=[I(f"buffer_load_dwordx4 {v4(4*ks)}, v231, s[4:7], s54 offen offset:{64*ks}") for ks in range(4)]
    R+=T("s_waitcnt vmcnt(0) lgkmcnt(0)")
    for j in range(5):
        for ks in range(4): R.append(I(f"{M32} {v4(16+4*j)}, {v4(4*ks)}, {a4(AQ(j,ks))}, {v4(16+4*j) if ks else 0}"))
    for j in range(5): b=16+4*j; R+=T(f"v_max3_f32 v{MF+j}, v{MF+j}, v{b}, v{b+1}\nv_max3_f32 v{MF+j}, v{MF+j}, v{b+2}, v{b+3}")
    R+=T("s_add_u32 s54, s54, 4096\ns_sub_u32 s55, s55, 1\ns_cmp_lg_u32 s55, 0\ns_cbranch_scc1 L_mp")
    return L,R
def finish():
    return T(f"""
    s_cmp_lg_u32 s43, 0
    s_cbranch_scc1 L_redo
    v_mov_b32 v{QT}, s36
    v_mov_b32 v{QT+1}, {STGB}
    ds_write_b32 v{STG}, v{QT}
    s_waitcnt lgkmcnt(0)
    s_barrier
    ds_read_b32 v{QO}, v{QT+1}
    ds_read_b32 v{QO+1}, v{QT+1} offset:20480
    ds_read_b32 v{QO+2}, v{QT+1} offset:40960
    ds_read_b32 v{QO+3}, v{QT+1} offset:61440
    s_waitcnt lgkmcnt(0)
    v_or_b32 v{QO}, v{QO}, v{QO+1}
    v_or3_b32 v{QO}, v{QO}, v{QO+2}, v{QO+3}
    s_nop 1
    v_readfirstlane_b32 s56, v{QO}
    s_mov_b32 s43, 1
    s_nop 3
    L_redo:
    s_and_b32 s56, s56, 15
    s_cbranch_scc0 L_end
    s_ff1_i32_b32 s45, s56
    s_bitset0_b32 s56, s45
    s_mul_i32 s45, s45, {128*HEAD}
    s_add_u32 s34, s51, s45
    s_mov_b32 s33, 1
    s_waitcnt vmcnt(0) lgkmcnt(0)
    s_barrier
    s_branch L_start
    L_end:
    """)
def generate(path,opt={}):
    global OPT; OPT=opt
    sc=schedule(); gT=sc.qk0[93]; n=len(sc.m)
    A=('old','new','both')
    body=[I("L_body:")]+sc.lin(0,gT-1,A)+T("s_cmp_eq_u32 s33, 0\ns_cbranch_scc1 L_tail")
    import copy
    trans=sc.lin(gT,n-1,A)+T("s_branch L_body")
    pro=[I("L_go:")]+copy.deepcopy(sc.lin(gT,n-1,('new','both')))
    tail=[I("L_tail:")]+copy.deepcopy(sc.lin(gT,n-1,('old','both','tail')))
    su=setup(); st,redo=start(); fin=finish()
    su,_=fix_hazards(su); st,_=fix_hazards(st); redo,_=fix_hazards(redo); pro,a0=fix_hazards(pro,[st,redo])
    body,a1=fix_hazards(body,[pro,trans]); trans,a2=fix_hazards(trans,[body]); tail,a3=fix_hazards(tail,[body]); fin,_=fix_hazards(fin,[tail])
    for p in ([su,st,pro,body,trans,body,trans,body,tail,fin],[su,st,redo,pro,body,tail,fin]): resolve_waits(p)
    for p in ([su,st,pro,body,trans,body,trans,body,tail,fin],[su,st,redo,pro,body,tail,fin]): check_loads(p)
    over=[max(0,u-2) for u in sc.used]
    print(path,"nops",a0,a1,a2,a3,"overfill body",sum(over[:gT]),"trans",sum(over[gT:]),"len",len(pro),len(body),len(trans),len(tail))
    seq=su+st+redo+pro+body+trans+tail+fin
    if opt.get('stamp'): seq=opt['stamp'](su,st,redo,pro,body,trans,tail,fin)
    ref=open("standalone__gqa_softmax__near_ridge.s.ref").read().split('\n')
    hd=[x for x in ref[:ref.index("standalone__gqa_softmax__near_ridge_kernel:")+1]]
    hd=[("; @launch grid=(256,1,1) block=(256,1,1) lds=163840" if x.startswith("; @launch") else x) for x in hd]
    ft=ref[ref.index("s_endpgm"):]
    ft=[x.replace("next_free_vgpr 256","next_free_vgpr 512") for x in ft]
    open(path,"w").write("\n".join(hd+[("" if x.k=='label' else "    ")+x.emit() for x in seq]+ft))
    build(path)
if __name__=="__main__":
    generate("k0.s")
```

```python
from gen import *
def mkstamp(wg):
    def st1():
        return T("s_memtime s[60:61]\ns_waitcnt lgkmcnt(0)\n"+"\n".join(f"s_mov_b32 s{64+i}, s{64+i+1}" for i in range(11))+"\ns_mov_b32 s75, s60")
    def f(su,st,redo,pro,body,trans,tail,fin):
        a=su[:2]+T("s_memrealtime s[76:77]")+st1()+su[2:]
        out=T(f"""s_memrealtime s[78:79]
        s_load_dwordx2 s[80:81], s[0:1], 32
        s_waitcnt lgkmcnt(0)
        s_mov_b32 s82, 256
        s_mov_b32 s83, 0x00020000
        s_sub_u32 s78, s78, s76
        s_cmp_lg_u32 s2, {wg}
        s_cbranch_scc1 L_nost
        s_cmp_lg_u32 s48, 0
        s_cbranch_scc1 L_nost
        v_mov_b32 v1, 0""")
        for i in range(10): out+=T(f"s_sub_u32 s60, s{66+i}, s{65+i}\nv_mov_b32 v0, s60\nbuffer_store_dword v0, v1, s[80:83], 0 offen offset:{4*i}")
        out+=T(f"s_sub_u32 s60, s75, s65\nv_mov_b32 v0, s60\nbuffer_store_dword v0, v1, s[80:83], 0 offen offset:40\nv_mov_b32 v0, s78\nbuffer_store_dword v0, v1, s[80:83], 0 offen offset:44\nL_nost:")
        return a+st+redo+pro[:1]+st1()+pro[1:]+body[:1]+st1()+body[1:-2]+st1()+body[-2:]+trans+tail+T("s_waitcnt vmcnt(0)")+st1()+out+fin
    return f
if __name__=="__main__":
    generate("k0s.s",{'stamp':mkstamp(5)})
    generate("k0t.s",{'stamp':mkstamp(200)})
```
